```python
import torch

def _softmax(x, axis=-1):
    return torch.softmax(x, dim=axis)
def _gelu(x):
    return torch.nn.functional.gelu(x, approximate="tanh")
def _silu(x):
    return torch.nn.functional.silu(x)
def _sigmoid(x):
    return torch.sigmoid(x)
def _layernorm(x, axis=-1, eps=1e-5):
    m = x.mean(dim=axis, keepdim=True)
    v = x.var(dim=axis, keepdim=True, unbiased=False)
    return (x - m) / torch.sqrt(v + eps)
def _scatter_add(tgt, idx, src, axis=0):
    return tgt.clone().index_add_(axis, idx, src)
def _segment_sum(src, seg, n):
    out = torch.zeros((n,) + src.shape[1:], dtype=src.dtype)
    return out.index_add_(0, seg, src)
def _pad(x, pw):
    flat = tuple(v for pair in reversed(pw) for v in pair)
    return torch.nn.functional.pad(x, flat)

kernel_name = 'sequential_preLN__ssm_conv_s4d__mixer_s_mlp__prompt'

def setup_inputs():

    _w = (lambda a: (lambda t: t.to(torch.bfloat16) if t.is_floating_point() else t)(torch.as_tensor(a)))
    def _A_setup():
        Bsz, L, D, N = 1, 2048, 512, 128
        return {
            "u": _w((lambda *s: torch.randn(*s, dtype=torch.bfloat16) * 0.05)(Bsz, L, D)),
            "log_A_real": _w((lambda *s: torch.randn(*s, dtype=torch.bfloat16) * 6.4)(D, N) * 0.5),
            "A_imag": _w((lambda *s: torch.randn(*s, dtype=torch.bfloat16) * 0.05)(D, N) * 3.14),
            "C_real": _w((lambda *s: torch.randn(*s, dtype=torch.bfloat16) * 0.05)(D, N) / N ** 0.5),
            "C_imag": _w((lambda *s: torch.randn(*s, dtype=torch.bfloat16) * 0.05)(D, N) / N ** 0.5),
            "log_dt": _w((lambda *s: torch.randn(*s, dtype=torch.bfloat16) * 0.05)(D) * 0.5 - 4.0),
            "D_skip": _w((lambda *s: torch.randn(*s, dtype=torch.bfloat16) * 0.05)(D)),
        }
    _A_in = _A_setup()

    def _B_setup():
        B, S, D, F = 1, 2048, 512, 1376
        return {
            "x":  _w((lambda *s: torch.randn(*s, dtype=torch.bfloat16) * 0.05)(B, S, D)),
            "w1": _w((lambda *s: torch.randn(*s, dtype=torch.bfloat16) * 6.4)(D, D) * (D ** -0.5)),
            "w2": _w((lambda *s: torch.randn(*s, dtype=torch.bfloat16) * 6.4)(D, D) * (D ** -0.5)),
            "w3": _w((lambda *s: torch.randn(*s, dtype=torch.bfloat16) * 6.4)(D, F) * (D ** -0.5)),
            "w4": _w((lambda *s: torch.randn(*s, dtype=torch.bfloat16) * 6.4)(F, D) * (F ** -0.5)),
        }
    _B_in = _B_setup()

    return {
        "A_u": _A_in["u"],
        "A_log_A_real": _A_in["log_A_real"],
        "A_A_imag": _A_in["A_imag"],
        "A_C_real": _A_in["C_real"],
        "A_C_imag": _A_in["C_imag"],
        "A_log_dt": _A_in["log_dt"],
        "A_D_skip": _A_in["D_skip"],
        "B_x": _B_in["x"],
        "B_w1": _B_in["w1"],
        "B_w2": _B_in["w2"],
        "B_w3": _B_in["w3"],
        "B_w4": _B_in["w4"],
    }

def reference(A_u, A_log_A_real, A_A_imag, A_C_real, A_C_imag, A_log_dt, A_D_skip, B_x, B_w1, B_w2, B_w3, B_w4):
    def _A_ref(u, log_A_real, A_imag, C_real, C_imag, log_dt, D_skip):
        L = u.shape[1]
        dt = torch.exp(log_dt)
        A = -torch.exp(log_A_real) + 1j * A_imag
        C = (C_real + 1j * C_imag) * dt[:, None]
        pos = (lambda x, dt: x.to(dt))(torch.arange(L), log_dt.dtype)
        P = torch.exp((A * dt[:, None])[:, :, None] * pos[None, None, :])
        K = 2.0 * torch.einsum("dn,dnl->dl", C, P).real
        L2 = 2 * L
        u_t = (lambda x, *d: x.permute(*d))(u, 0, 2, 1)
        Kf = (lambda x, *a, **k: torch.fft.rfft(x.float(), *a, **k))(K, L2)
        Uf = (lambda x, *a, **k: torch.fft.rfft(x.float(), *a, **k))(u_t, L2)
        y = (lambda x, *a, **k: torch.fft.irfft(x, *a, **k).to(torch.bfloat16))(Uf * Kf[None, :, :], L2)[:, :, :L]
        y = (lambda x, *d: x.permute(*d))(y, 0, 2, 1)
        return y + u * D_skip[None, None, :]

    def _B_ref(x, w1, w2, w3, w4):
        B, S, D = x.shape
        h = _gelu(_layernorm(x, axis=-1) @ w1)
        c = D // 4
        g0 = _pad(h[:, :, 0*c:1*c], ((0, 0), (1, 0), (0, 0)))[:, :S, :]
        g1 = _pad(h[:, :, 1*c:2*c], ((0, 0), (0, 1), (0, 0)))[:, 1:, :]
        g2 = _pad(h[:, :, 2*c:3*c], ((0, 0), (2, 0), (0, 0)))[:, :S, :]
        g3 = _pad(h[:, :, 3*c:   ], ((0, 0), (0, 2), (0, 0)))[:, 2:, :]
        hs = torch.concatenate([g0, g1, g2, g3], axis=-1) @ w2
        x1 = x + hs
        h2 = _gelu(_layernorm(x1, axis=-1) @ w3) @ w4
        return x1 + h2

    x = A_u
    h = x + _A_ref(_layernorm(x, axis=-1), A_log_A_real, A_A_imag, A_C_real, A_C_imag, A_log_dt, A_D_skip)
    h2 = h + _B_ref(_layernorm(h, axis=-1), B_w1, B_w2, B_w3, B_w4)
    return h2
```

```python
import re

TRANS = ("v_exp_f32", "v_log_f32", "v_rcp_f32", "v_rsq_f32", "v_sqrt_f32", "v_sin_f32", "v_cos_f32")
REG_RE = re.compile(r"^(-|abs\()?([vas])(?:(\d+)|\[(\d+):(\d+)\])\)?$")


def regs_of(tok):
    tok = tok.strip()
    if tok in ("vcc",):
        return {("s", 106), ("s", 107)}
    if tok == "vcc_lo":
        return {("s", 106)}
    if tok == "exec":
        return {("s", 126), ("s", 127)}
    if tok == "m0":
        return {("s", 124)}
    m = REG_RE.match(tok)
    if not m:
        return set()
    k = m.group(2)
    if m.group(3) is not None:
        return {(k, int(m.group(3)))}
    return {(k, i) for i in range(int(m.group(4)), int(m.group(5)) + 1)}


class Ins:
    __slots__ = ("text", "op", "kind", "defs", "uses", "srcc", "passes", "dpp", "wide_store", "lds_dma", "ws")

    def __init__(self, text):
        self.text = text
        t = text.split(";")[0].strip()
        parts = t.split(None, 1)
        self.op = op = parts[0]
        rest = parts[1] if len(parts) > 1 else ""
        ops = [o.strip() for o in re.split(r",(?![^\[]*\])", rest)] if rest else []
        mods = ""
        if ops:
            last = ops[-1].split(None, 1)
            ops[-1] = last[0]
            mods = last[1] if len(last) > 1 else ""
        self.defs, self.uses, self.srcc = set(), set(), set()
        self.passes = 0
        self.dpp = "_dpp" in op or "quad_perm" in mods or "row_" in mods
        self.wide_store = False
        self.lds_dma = False
        self.ws = 1
        R = [regs_of(o) for o in ops]
        U = lambda idx: set().union(*[R[i] for i in idx if i < len(R)]) if idx else set()
        allr = range(len(R))
        if op == "s_nop":
            self.kind = "nop"
            self.ws = int(ops[0], 0) + 1
        elif op.startswith("v_mfma"):
            self.kind = "mfma"
            self.passes = 8 if "32x32" in op else 4
            self.defs = R[0]
            self.uses = U([1, 2, 3])
            self.srcc = R[3]
        elif op.startswith("v_"):
            self.kind = "trans" if op.replace("_e32", "").replace("_e64", "") in TRANS else "valu"
            if op.startswith("v_dot"):
                self.kind = "dot"
            if op.startswith("v_cmp"):
                self.defs = R[0]
                self.uses = U(allr[1:])
            elif op.startswith("v_permlane") or op.startswith("v_swap"):
                self.defs = U([0, 1])
                self.uses = U([0, 1])
            elif op.startswith(("v_add_co", "v_sub_co", "v_addc_co", "v_subb_co")):
                self.defs = U([0, 1])
                self.uses = U(allr[2:])
            else:
                self.defs = R[0]
                self.uses = U(allr[1:])
                if op.startswith(("v_fmac", "v_dot2c", "v_writelane")) or self.dpp:
                    self.uses |= R[0]
        elif op.startswith("ds_"):
            self.kind = "ds"
            if op.startswith("ds_read") or op.startswith("ds_bpermute") or op.startswith("ds_swizzle"):
                self.defs = R[0]
                self.uses = U(allr[1:])
            else:
                self.uses = U(allr)
        elif op.startswith(("buffer_", "global_")):
            self.kind = "vmem"
            toks = mods.split()
            if "lds" in toks:
                self.lds_dma = True
                self.uses = U(allr) | {("s", 124)}
            elif "_load" in op:
                self.defs = R[0]
                self.uses = U(allr[1:])
                if "d16" in op:
                    self.uses |= R[0]
            else:
                self.uses = U(allr)
                if op.endswith(("x3", "x4")):
                    self.wide_store = True
                    self.srcc = R[0] if op.startswith("buffer_") else R[1]
        elif op.startswith(("s_load", "s_memtime", "s_memrealtime", "s_buffer_load")):
            self.kind = "smem"
            self.defs = R[0]
            self.uses = U(allr[1:])
        elif op.startswith("s_"):
            self.kind = "salu"
            if op.startswith(("s_cmp", "s_cbranch", "s_branch", "s_waitcnt", "s_barrier", "s_sleep", "s_setprio", "s_endpgm", "s_bitcmp")):
                self.uses = U(allr)
            else:
                self.defs = R[0] if R else set()
                self.uses = U(allr[1:])
        else:
            raise ValueError("unknown op " + text)


def isv(r):
    return r[0] in "va"


def need(p, c):
    n = 0
    valu_p = p.kind in ("valu", "trans", "dot")
    valu_c = c.kind in ("valu", "trans", "dot")
    vd = {r for r in p.defs if isv(r)}
    sd = {r for r in p.defs if r[0] == "s"}
    if valu_p:
        raw = vd & c.uses
        if raw:
            if c.kind == "mfma":
                n = max(n, 3 if p.kind == "dot" else 2)
            if c.op.startswith(("v_readlane", "v_readfirstlane")):
                n = max(n, 1)
            if c.op.startswith("v_permlane"):
                n = max(n, 2)
            if c.dpp:
                n = max(n, 2)
            if p.kind == "trans" and c.kind != "trans":
                n = max(n, 1)
            if p.op.startswith("v_permlane"):
                n = max(n, 1)
        if p.kind == "dot" and (vd & (c.uses | c.defs)):
            same_c = c.op == p.op and (vd & c.defs) and not _dot_ab(c, vd)
            if not same_c:
                n = max(n, 3)
        if sd & c.uses:
            if valu_c:
                n = max(n, 4 if c.op.startswith(("v_readlane", "v_writelane")) else 2)
            if c.kind == "vmem":
                n = max(n, 5)
            if c.kind in ("salu",):
                n = max(n, 1)
    if p.kind == "mfma":
        big = p.passes == 8
        if c.kind == "mfma":
            if vd & (c.uses - c.srcc):
                n = max(n, 12 if big else 8)
            elif vd & c.srcc:
                if not (c.srcc == p.defs and c.passes == p.passes):
                    n = max(n, 10 if big else 6)
            elif vd & c.defs:
                n = max(n, 12 if big else 8)
        elif vd & (c.uses | c.defs):
            n = max(n, 12 if big else 8)
        if valu_c and (p.srcc & c.defs):
            n = max(n, 7 if big else 3)
    if p.kind == "salu" and ("s", 124) in p.defs and c.lds_dma:
        n = max(n, 1)
    if p.wide_store and (p.srcc & c.defs):
        n = max(n, 2)
    return n


def _dot_ab(c, vd):
    ops = [o.strip() for o in re.split(r",(?![^\[]*\])", c.text.split(";")[0].split(None, 1)[1])]
    return bool((regs_of(ops[1]) | regs_of(ops[2].split()[0])) & vd)


class Asm:
    def __init__(self):
        self.lines = []

    def __call__(self, text):
        for ln in text.split("\n"):
            ln = ln.strip()
            if not ln or ln.startswith(";"):
                continue
            if ln.endswith(":") or ln.startswith("."):
                self.lines.append(ln)
            else:
                self.lines.append(Ins(ln))

    def extend(self, lst):
        for x in lst:
            self(x)

    def render(self):
        out = []
        hist = []
        nops = 0
        for x in self.lines:
            if isinstance(x, str):
                out.append(x)
                continue
            d = 0
            req = 0
            for p in reversed(hist):
                k = need(p, x)
                if k - d > req:
                    req = k - d
                d += p.ws
                if d >= 14:
                    break
            if req > 0:
                nop = Ins(f"s_nop {req-1}")
                hist.append(nop)
                out.append("  " + nop.text)
                nops += 1
            hist.append(x)
            hist = hist[-16:]
            out.append("  " + x.text)
        self.nops = nops
        return "\n".join(out) + "\n"


def interleave(main, side, start=0, every=1, per=1):
    out = []
    side = list(side)
    for i, m in enumerate(main):
        out.append(m)
        if i >= start and (i - start) % every == every - 1:
            for _ in range(per):
                if side:
                    out.append(side.pop(0))
    out.extend(side)
    return out
```

```python
from gen import *

V_T, V_G = 20, 21
VTR = 22
VDW = 26
HP = 8
S_GA, S_GB = 74, 75

W3SLOT = 11520


def w3reg(f, s):
    i = f * 16 + s
    return ("v", 144 + 4 * i) if i < 28 else ("a", 176 + 4 * (i - 28))


def w4reg(i, f):
    return ("a", (i * 4 + f) * 4)


def rq(r, off=0, n=4):
    return f"{r[0]}[{r[1]+off}:{r[1]+off+n-1}]"


def tr_addr(g):
    a = g.a
    a(f"""
    v_bfe_u32 v30, v1, 2, 2              ; rr
    v_and_b32 v31, 3, v1                 ; cc
    v_lshl_add_u32 v{VTR}, v{V_G}, 2, v30
    v_lshlrev_b32 v{VTR}, 7, v{VTR}
    v_lshl_add_u32 v{VTR}, v31, 3, v{VTR}
    v_bfe_u32 v30, v1, 3, 2              ; f = (rr>>1) | ((g&1)<<1)
    v_lshl_add_u32 v{VTR}, v30, 5, v{VTR}
    v_xor_b32 v{VTR+1}, 32, v{VTR}
    v_xor_b32 v{VTR+2}, 64, v{VTR}
    v_xor_b32 v{VTR+3}, 96, v{VTR}
    """)


def dma_off_img(g, rowshift, w4=False):
    a = g.a
    a(f"""
    v_lshrrev_b32 v30, 3, v1
    v_lshlrev_b32 v30, {rowshift}, v30
    v_and_b32 v31, 7, v1
    """)
    if not w4:
        a(f"""
        v_lshlrev_b32 v{VDW}, 1, v{V_G}
        v_xor_b32 v31, v31, v{VDW}
        v_lshl_add_u32 v{VDW}, v31, 4, v30
        """)
        for j in range(1, 4):
            a(f"v_add_u32 v{VDW+j}, {j*((8<<rowshift)-1024)}, v{VDW}")
    else:
        a(f"""
        v_and_b32 v{VDW}, 1, v{V_G}
        v_lshlrev_b32 v{VDW}, 1, v{VDW}
        v_xor_b32 v31, v31, v{VDW}
        v_lshl_add_u32 v{VDW}, v31, 4, v30
        v_xor_b32 v30, 64, v{VDW}
        v_add_u32 v{VDW+1}, {(8<<rowshift)-1024}, v30
        v_add_u32 v{VDW+2}, {2*((8<<rowshift)-1024)}, v{VDW}
        v_add_u32 v{VDW+3}, {3*((8<<rowshift)-1024)}, v30
        """)


def dma4(sr, soff, flags=""):
    return [f"buffer_load_dwordx4 v{VDW+j}, {srd(sr)}, {soff} offen offset:{1024*j} {flags} lds" for j in range(4)]


def stage_img(g, sr, img):
    out = [f"s_lshl_b32 {S_T0}, {S_W}, 12", f"s_add_u32 {S_T0}, {S_T0}, {img}",
           f"s_lshl_b32 {S_T1}, {S_W}, 15", f"s_lshl_b32 {S_T2}, {S_C}, 7", f"s_add_u32 {S_T1}, {S_T1}, {S_T2}"]
    for i in range(4):
        out.append(f"s_add_u32 m0, {S_T0}, {i*16384}")
        out.append(f"s_add_u32 {S_T2}, {S_T1}, {i*131072}")
        out += dma4(sr, S_T2)
    return out


def stage_w3_blocking(g):
    a = g.a
    for i in range(3):
        a(f"""
        v_add_u32 v30, {64*i}, v1
        v_mul_u32_u24 v31, 2979, v30
        v_lshrrev_b32 v31, 16, v31           ; u/22
        v_mul_u32_u24 v29, 22, v31
        v_sub_u32 v30, v30, v29
        v_mul_u32_u24 v31, 2752, v31
        v_lshl_add_u32 v{VDW+i}, v30, 4, v31
        """)
        if i:
            a(f"v_subrev_u32 v{VDW+i}, {1024*i}, v{VDW+i}")
    a(f"""
    s_mul_i32 {S_T1}, {S_C}, 352
    s_min_u32 {S_T1}, {S_T1}, {76*32}
    s_mul_i32 {S_T2}, {S_W}, {8*2752}
    s_add_u32 {S_T1}, {S_T1}, {S_T2}
    s_mul_i32 {S_T0}, {S_W}, 2816
    v_bfe_u32 v30, v1, 2, 2
    v_lshl_add_u32 v30, v{V_G}, 2, v30
    v_mul_u32_u24 v30, 352, v30
    v_and_b32 v31, 3, v1
    v_lshl_add_u32 v30, v31, 3, v30
    s_mul_i32 {S_T2}, {S_W}, 96
    v_add_u32 v29, {S_T2}, v30
    """)
    for B in range(4):
        for k in range(4):
            s = 4 * B + k
            a(f"s_add_u32 m0, {S_T0}, {LA + k*W3SLOT}")
            a(f"s_add_u32 {S_T2}, {S_T1}, {s*32*2752}")
            for i in range(3):
                a(f"buffer_load_dwordx4 v{VDW+i}, {srd(SW3)}, {S_T2} offen offset:{1024*i} lds")
        a("s_waitcnt vmcnt(0)\ns_barrier")
        for k in range(4):
            s = 4 * B + k
            for f in range(3):
                r = w3reg(f, s)
                for h in range(2):
                    a(f"ds_read_b64_tr_b16 {rq(r, 2*h, 2)}, v29 offset:{LA + k*W3SLOT + h*16*352 + f*32}")
        a("s_waitcnt lgkmcnt(0)\ns_barrier")


def stage_w4_blocking(g):
    a = g.a
    dma_off_img(g, 10, w4=True)
    a(f"""
    s_lshl_b32 {S_T0}, {S_W}, 14
    s_mul_i32 {S_T1}, {S_W}, {11*32768}
    s_lshl_b32 {S_T2}, {S_C}, 7
    s_add_u32 {S_T3}, {S_T2}, {42*32768}
    s_add_u32 {S_T1}, {S_T1}, {S_T2}
    v_lshl_add_u32 v30, v{V_G}, 9, {S_T0}
    """)
    for f in range(4):
        a(f"v_add_u32 v{32+f}, v30, v{VTR+f}")
    for B in range(3):
        ks = list(range(4 * B, min(4 * B + 4, 11)))
        for k, i in enumerate(ks):
            a(f"s_add_u32 m0, {S_T0}, {LA + k*4096}")
            a(f"s_add_u32 {S_T2}, {S_T1}, {i*32768}")
            a(f"s_min_u32 {S_T2}, {S_T2}, {S_T3}")
            a.extend(dma4(SW4, S_T2))
        a("s_waitcnt vmcnt(0)")
        for k, i in enumerate(ks):
            for f in range(4):
                for h in range(2):
                    a(f"ds_read_b64_tr_b16 {rq(w4reg(i, f), 2*h, 2)}, v{32+f} offset:{LA + k*4096 + h*512}")
        a("s_waitcnt lgkmcnt(0)")
    l = g.label("w4z")
    a(f"s_cmp_lg_u32 {S_W}, 3\ns_cbranch_scc1 {l}")
    for i in range(16):
        a(f"v_accvgpr_write_b32 a{160+i}, 0")
    a(f"{l}:")
    a("s_barrier")


def gelu(xs, t, outs):
    o = []
    P = lambda r: f"v[{r}:{r+1}]"
    n = len(xs)
    for i in range(n):
        o.append(f"v_pk_mul_f32 {P(t+2*i)}, {P(xs[i])}, {P(xs[i])}")
    for i in range(n):
        o.append(f"v_pk_fma_f32 {P(t+2*i)}, {P(t+2*i)}, s[{S_GA}:{S_GB}], s[{S_GA}:{S_GB}] op_sel:[0,1,0] op_sel_hi:[1,1,0]")
    for i in range(n):
        o.append(f"v_pk_mul_f32 {P(t+2*i)}, {P(t+2*i)}, {P(xs[i])}")
    for i in range(2 * n):
        o.append(f"v_exp_f32 v{t+i}, v{t+i}")
    for i in range(n):
        o.append(f"v_pk_add_f32 {P(t+2*i)}, {P(t+2*i)}, 1.0 op_sel_hi:[1,0]")
    for i in range(2 * n):
        o.append(f"v_rcp_f32 v{t+i}, v{t+i}")
    for i in range(n):
        o.append(f"v_pk_mul_f32 {P(t+2*i)}, {P(t+2*i)}, {P(xs[i])}")
    for i in range(n):
        o.append(f"v_cvt_pk_bf16_f32 v{outs[i]}, v{t+2*i}, v{t+2*i+1}")
    return o


def stat_tail(g, T, t2):
    return [
        f"v_mov_b32 v{t2}, v{T}",
        f"v_permlane16_swap_b32 v{T}, v{t2}",
        f"v_add_f32 v{T}, v{T}, v{t2}",
        f"v_mul_f32 v{T}, {f32(1/512)}, v{T}",
        f"v_mov_b32 v{t2}, v{T}",
        f"v_permlane32_swap_b32 v{T}, v{t2}",
        f"v_fma_f32 v{t2}, -v{T}, v{T}, v{t2}",
        f"v_max_f32 v{t2}, 0, v{t2}",
    ]


def rstd(g, d, var):
    return g.rnd(d, var) + [f"v_add_f32 v{d}, {f32(1e-5)}, v{d}"] + g.rnd(d, d) + [f"v_sqrt_f32 v{d}, v{d}"] + g.rnd(d, d) + [f"v_rcp_f32 v{d}, v{d}"]


def g1(g):
    a = g.a
    ACC, CS, WF, AF, RB = 32, 48, 64, 96, 104
    ONE, S, Q, VA = 120, 124, 125, 126
    for i in range(4):
        a(f"v_mov_b32 v{ONE+i}, 0x3f803f80")

    def wreads(s):
        b = WF + 16 * (s & 1)
        return [f"ds_read_b64_tr_b16 v[{b+4*f+2*h}:{b+4*f+2*h+1}], v{VTR+f} offset:{W1IMG + s*4096 + h*2048}" for f in range(4) for h in range(2)]
    a.extend(wreads(0))
    for s in range(16):
        if s < 15:
            a.extend(wreads(s + 1))
        a(f"s_waitcnt lgkmcnt({8 if s < 15 else 0})")
        b = WF + 16 * (s & 1)
        for f in range(4):
            c = f"v[{CS+4*f}:{CS+4*f+3}]"
            a(f"v_mfma_f32_16x16x32_bf16 {c}, v[{b+4*f}:{b+4*f+3}], v[{ONE}:{ONE+3}], {c if s else '0'}")
    g.stamp()
    dma_off_img(g, 12)
    a(f"""
    s_lshl_b32 {S_T0}, {S_W}, 12
    s_add_u32 {S_T0}, {S_T0}, {HIMG}
    s_lshl_b32 {S_T1}, {S_W}, 17
    s_lshl_b32 {S_T2}, {S_R}, 7
    s_add_u32 {S_T1}, {S_T1}, {S_T2}
    s_add_u32 {S_T1}, {S_T1}, {WS_H}
    s_lshl_b32 {S_T3}, {S_W}, 5
    v_xor_b32 v{VA}, {S_T3}, v{VTR}
    v_add_u32 v{VA}, {HIMG}, v{VA}
    v_add_u32 v{VA+1}, {S_T0}, v3
    v_mov_b32 v{S}, 0
    v_mov_b32 v{Q}, 0
    """)

    def hdma(i):
        return [f"s_add_u32 m0, {S_T0}, {i*16384}", f"s_add_u32 {S_T2}, {S_T1}, {i*128*4096}"] + dma4(SWS, S_T2, "sc1")
    for i in range(4):
        a.extend(hdma(i))

    def areads(s):
        b = AF + 4 * (s & 1)
        return [f"ds_read_b64_tr_b16 v[{b+2*h}:{b+2*h+1}], v{VA} offset:{s*4096 + h*2048}" for h in range(2)]
    for i in range(4):
        back = g.label("hchk")
        a(f"s_waitcnt vmcnt({12-4*i})")
        a(f"{back}:")
        for j in range(4):
            a(f"ds_read_b128 v[{RB+4*j}:{RB+4*j+3}], v{VA+1} offset:{i*16384 + j*1024}")
        a("s_waitcnt lgkmcnt(0)")
        a(f"v_max3_u32 v30, v{RB}, v{RB+1}, v{RB+2}")
        for j in range(3, 15, 2):
            a(f"v_max3_u32 v30, v30, v{RB+j}, v{RB+j+1}")
        a(f"v_max_u32 v30, v30, v{RB+15}")
        a("v_cmp_eq_u32 vcc, -1, v30")
        g.retry(hdma(i), back)
        a.extend(wreads(4 * i))
        a("s_barrier")
        a.extend(areads(4 * i))
        for k in range(4):
            s = 4 * i + k
            if k < 3:
                a.extend(areads(s + 1) + wreads(s + 1))
            a(f"s_waitcnt lgkmcnt({10 if k < 3 else 0})")
            b = WF + 16 * (s & 1)
            af = AF + 4 * (s & 1)
            for f in range(4):
                c = f"v[{ACC+4*f}:{ACC+4*f+3}]"
                a(f"v_mfma_f32_16x16x32_bf16 {c}, v[{b+4*f}:{b+4*f+3}], v[{af}:{af+3}], {c if s else '0'}")
                a(f"v_dot2c_f32_bf16 v{S}, v{af+f}, v{ONE}")
                a(f"v_dot2c_f32_bf16 v{Q}, v{af+f}, v{af+f}")
    a(f"""
    s_lshl_b32 {S_T3}, {S_C}, 13
    v_add_u32 v{VA}, {S_T3}, v{VA}
    """)
    for f in range(4):
        a(f"ds_read_b64_tr_b16 v[{HP+2*f}:{HP+2*f+1}], v{VA} offset:{f*2048}")
    dma_off_img(g, 10)
    a("s_waitcnt lgkmcnt(0)\ns_barrier")
    g.stamp()
    a.extend(stage_img(g, SW2, W2IMG))
    MB, RS, M2, RS2, AL, BE = 64, 65, 66, 67, 68, 69
    a(f"v_permlane32_swap_b32 v{S}, v{Q}")
    a(f"v_add_f32 v{S}, v{S}, v{Q}")
    a.extend(stat_tail(g, S, Q))
    a.extend(g.rnd(MB, S) + rstd(g, RS, Q))
    a(f"""
    v_sub_f32 v{M2}, v{S}, v{MB}
    v_mul_f32 v{Q}, v{Q}, v{RS}
    v_mul_f32 v{M2}, v{M2}, v{RS}
    v_mul_f32 v{Q}, v{Q}, v{RS}
    """)
    a.extend(g.rnd(M2, M2) + rstd(g, RS2, Q))
    a(f"""
    v_mul_f32 v{AL}, v{RS}, v{RS2}
    v_mul_f32 v{BE}, v{M2}, v{RS2}
    v_fma_f32 v{BE}, v{AL}, v{MB}, v{BE}
    """)
    for i in range(8):
        a(f"v_pk_mul_f32 v[{CS+2*i}:{CS+2*i+1}], v[{CS+2*i}:{CS+2*i+1}], v[{AL}:{BE}] op_sel:[0,1] op_sel_hi:[1,1]")
    for i in range(8):
        a(f"v_pk_fma_f32 v[{ACC+2*i}:{ACC+2*i+1}], v[{ACC+2*i}:{ACC+2*i+1}], v[{AL}:{BE}], v[{CS+2*i}:{CS+2*i+1}] op_sel_hi:[1,0,1] neg_lo:[0,0,1] neg_hi:[0,0,1]")
    OUT = 72
    a(f"""
    s_lshr_b32 {S_T0}, {S_C}, 1            ; quarter
    s_lshr_b32 {S_T1}, {S_T0}, 1
    s_add_u32 {S_T1}, {S_T1}, 1            ; |shift|
    s_sub_u32 {S_T2}, 0, {S_T1}
    s_bitcmp1_b32 {S_T0}, 0
    s_cselect_b32 {S_T1}, {S_T2}, {S_T1}
    s_lshl_b32 {S_T2}, {S_R}, 6
    s_lshl_b32 {S_T3}, {S_W}, 4
    s_add_u32 {S_T2}, {S_T2}, {S_T3}
    s_add_u32 {S_T1}, {S_T1}, {S_T2}
    v_add_u32 v30, {S_T1}, v{V_T}          ; T
    v_lshrrev_b32 v31, 6, v30
    v_lshlrev_b32 v31, 16, v31
    v_and_b32 v16, 63, v30
    v_lshl_add_u32 v31, v16, 4, v31
    v_lshl_add_u32 v31, v{V_G}, 10, v31
    v_bfrev_b32 v17, 1
    v_cmp_gt_u32 vcc, 2048, v30
    v_cndmask_b32 v31, v17, v31, vcc
    s_lshl_b32 {S_T0}, {S_C}, 13
    s_add_u32 {S_T0}, {S_T0}, {WS_G}
    s_add_u32 {S_T1}, {S_T0}, 4096
    """)
    for k in range(2):
        a.extend(gelu([ACC + 8 * k + 2 * i for i in range(4)], 80, [OUT + 4 * k + i for i in range(4)]))
        a(f"buffer_store_dwordx4 v[{OUT+4*k}:{OUT+4*k+3}], v31, {srd(SWS)}, {S_T0 if k == 0 else S_T1} offen sc1")
    g.stamp()
    a(f"v_mul_f32 v{MB}, v{MB}, v{RS}")
    for i in range(8):
        a(f"v_lshlrev_b32 v{ACC+2*i}, 16, v{HP+i}")
        a(f"v_and_b32 v{ACC+2*i+1}, {S_HI16}, v{HP+i}")
    for i in range(8):
        a(f"v_pk_fma_f32 v[{ACC+2*i}:{ACC+2*i+1}], v[{ACC+2*i}:{ACC+2*i+1}], v[{MB}:{RS}], v[{MB}:{RS}] op_sel:[0,1,0] op_sel_hi:[1,1,0] neg_lo:[0,0,1] neg_hi:[0,0,1]")


def g2(g):
    a = g.a
    ACC, WF, AF = 32, 48, 80
    VO = VDW
    a(f"""
    v_add_u32 v30, {S_T2}, v{V_T}
    s_lshl_b32 {S_T3}, {S_W}, 8
    v_lshl_add_u32 v16, v{V_T}, 4, {S_T3}
    v_lshl_add_u32 v16, v{V_G}, 10, v16
    v_cmp_le_u32 vcc, 1, v30
    v_cndmask_b32 v{VO}, v17, v16, vcc
    v_cmp_gt_u32 vcc, 2047, v30
    v_cndmask_b32 v{VO+1}, v17, v16, vcc
    v_cmp_le_u32 vcc, 2, v30
    v_cndmask_b32 v{VO+2}, v17, v16, vcc
    v_cmp_gt_u32 vcc, 2046, v30
    v_cndmask_b32 v{VO+3}, v17, v16, vcc
    s_lshl_b32 {S_T0}, {S_R}, 16
    s_add_u32 {S_T0}, {S_T0}, {WS_G}
    """)
    for f in range(4):
        a(f"v_add_u32 v{VTR+f}, {W2IMG}, v{VTR+f}")
    a("s_waitcnt vmcnt(0)\ns_barrier")
    g.stamp()

    def loads(q):
        o = []
        for k in range(4):
            s = 4 * q + k
            o.append(f"s_add_u32 {S_T1}, {S_T0}, {s*4096}")
            o.append(f"buffer_load_dwordx4 v[{AF+4*s}:{AF+4*s+3}], v{VO+q}, {srd(SWS)}, {S_T1} offen sc1")
        return o

    def wreads(s):
        b = WF + 16 * (s & 1)
        return [f"ds_read_b64_tr_b16 v[{b+4*f+2*h}:{b+4*f+2*h+1}], v{VTR+f} offset:{s*4096 + h*2048}" for f in range(4) for h in range(2)]
    for q in range(4):
        a.extend(loads(q))
    a.extend(wreads(0))
    for q in range(4):
        back = g.label("gchk")
        a(f"s_waitcnt vmcnt({12-4*q})")
        a(f"{back}:")
        R = AF + 16 * q
        a(f"v_max3_u32 v30, v{R}, v{R+1}, v{R+2}")
        for j in range(3, 15, 2):
            a(f"v_max3_u32 v30, v30, v{R+j}, v{R+j+1}")
        a(f"v_max_u32 v30, v30, v{R+15}")
        a("v_cmp_eq_u32 vcc, -1, v30")
        g.retry(loads(q), back)
        for k in range(4):
            s = 4 * q + k
            if s < 15:
                a.extend(wreads(s + 1))
            a(f"s_waitcnt lgkmcnt({8 if s < 15 else 0})")
            b = WF + 16 * (s & 1)
            for f in range(4):
                c = f"v[{ACC+4*f}:{ACC+4*f+3}]"
                a(f"v_mfma_f32_16x16x32_bf16 {c}, v[{b+4*f}:{b+4*f+3}], v[{AF+4*s}:{AF+4*s+3}], {c}")
    OUT = 48
    a(f"""
    s_lshl_b32 {S_T0}, {S_R}, 16
    s_add_u32 {S_T0}, {S_T0}, {WS_X1}
    s_lshl_b32 {S_T1}, {S_C}, 13
    s_add_u32 {S_T1}, {S_T1}, {S_T0}
    s_add_u32 {S_T2}, {S_T1}, 4096
    """)
    for i in range(8):
        a(f"v_cvt_pk_bf16_f32 v{OUT+i}, v{ACC+2*i}, v{ACC+2*i+1}")
    a(f"buffer_store_dwordx4 v[{OUT}:{OUT+3}], v16, {srd(SWS)}, {S_T1} offen sc1")
    a(f"buffer_store_dwordx4 v[{OUT+4}:{OUT+7}], v16, {srd(SWS)}, {S_T2} offen sc1")
    g.stamp()
    for i in range(8):
        a(f"""
        v_lshlrev_b32 v{ACC+2*i}, 16, v{OUT+i}
        v_and_b32 v{ACC+2*i+1}, {S_HI16}, v{OUT+i}
        v_lshlrev_b32 v56, 16, v{HP+i}
        v_and_b32 v57, {S_HI16}, v{HP+i}
        v_pk_add_f32 v[{ACC+2*i}:{ACC+2*i+1}], v[{ACC+2*i}:{ACC+2*i+1}], v[56:57]
        """)


def g3(g):
    a = g.a
    CS, ACC, AF, RB, ONE, S, Q = 48, 60, 84, 100, 116, 120, 121
    OUT = 8
    PK = 124
    TMP = 100
    for i in range(4):
        a(f"v_mov_b32 v{ONE+i}, 0x3f803f80")
    for s in range(16):
        for f in range(3):
            c = f"v[{CS+4*f}:{CS+4*f+3}]"
            a(f"v_mfma_f32_16x16x32_bf16 {c}, {rq(w3reg(f, s))}, v[{ONE}:{ONE+3}], {c if s else '0'}")
    a(f"""
    v_lshlrev_b32 v{VDW}, 4, v{V_T}
    v_lshl_add_u32 v{VDW}, v{V_G}, 10, v{VDW}
    v_add_u32 v{VDW+1}, 3072, v{VDW}
    v_add_u32 v{VDW+2}, 6144, v{VDW}
    v_add_u32 v{VDW+3}, 9216, v{VDW}
    s_lshl_b32 {S_T1}, {S_W}, 14
    s_add_u32 {S_T1}, {S_T1}, {S_T0}
    s_lshl_b32 {S_T0}, {S_W}, 12
    s_add_u32 {S_T0}, {S_T0}, {XIMG}
    v_add_u32 v22, {S_T0}, v3
    s_lshl_b32 {S_T3}, {S_W}, 2
    s_add_u32 {S_T3}, {S_T3}, {STAT}
    v_add_u32 v23, {S_T3}, v3
    v_add_u32 v24, {STAT}, v3
    v_lshrrev_b32 v25, 1, v{V_G}
    v_lshlrev_b32 v25, 10, v25
    v_and_b32 v30, 1, v{V_G}
    v_lshl_add_u32 v25, v30, 8, v25
    v_lshl_add_u32 v25, v{V_T}, 4, v25
    s_mul_i32 {S_T3}, {S_C}, 11
    s_min_u32 {S_T3}, {S_T3}, 76
    s_mul_i32 {S_T4}, {S_W}, 3
    s_add_u32 {S_T3}, {S_T3}, {S_T4}
    s_lshl_b32 {S_T3}, {S_T3}, 11
    s_mul_i32 {S_T5}, {S_R}, {HID_R}
    s_add_u32 {S_T3}, {S_T3}, {S_T5}
    s_add_u32 {S_T3}, {S_T3}, {WS_HID}
    s_cmp_lt_u32 {S_C}, 6
    s_cselect_b32 {S_T5}, 11, 10
    s_sub_u32 {S_T4}, {S_T5}, {S_T4}
    s_waitcnt vmcnt(0)
    """)
    g.stamp()

    def xdma(i):
        return [f"s_add_u32 m0, {S_T0}, {i*16384}", f"s_add_u32 {S_T2}, {S_T1}, {i*256}"] + dma4(SWS, S_T2, "sc1")
    for i in range(4):
        a.extend(xdma(i))
    nst = 0
    for i in range(4):
        back = g.label("xchk")
        a(f"s_waitcnt vmcnt({12-4*i if i < 2 else 0})")
        a(f"{back}:")
        for j in range(4):
            a(f"ds_read_b128 v[{RB+4*j}:{RB+4*j+3}], v22 offset:{i*16384 + j*1024}")
        a(f"v_mov_b32 v{S}, 0\nv_mov_b32 v{Q}, 0")
        a("s_waitcnt lgkmcnt(0)")
        for j in range(16):
            a(f"v_dot2c_f32_bf16 v{S}, v{RB+j}, v{ONE}")
            a(f"v_dot2c_f32_bf16 v{Q}, v{RB+j}, v{RB+j}")
        a(f"v_cmp_u_f32 vcc, v{Q}, v{Q}")
        g.retry(xdma(i), back)
        a(f"""
        v_permlane32_swap_b32 v{S}, v{Q}
        v_add_f32 v{S}, v{S}, v{Q}
        ds_write_b32 v23, v{S} offset:{i*1024}
        s_waitcnt lgkmcnt(0)
        s_barrier
        ds_read_b128 v[{RB}:{RB+3}], v24 offset:{i*1024}
        """)
        acc = ACC + 12 * (i & 1)

        def ard(s):
            b = AF + 4 * (s & 3)
            return f"ds_read_b128 v[{b}:{b+3}], v3 offset:{XIMG + i*16384 + s*1024}"
        for s in range(3):
            a(ard(s))
        for s in range(16):
            if s + 3 < 16:
                a(ard(s + 3))
            a(f"s_waitcnt lgkmcnt({min(3, 15-s)})")
            b = AF + 4 * (s & 3)
            for f in range(3):
                c = f"v[{acc+4*f}:{acc+4*f+3}]"
                a(f"v_mfma_f32_16x16x32_bf16 {c}, {rq(w3reg(f, s))}, v[{b}:{b+3}], {c if s else '0'}")
        AL, BE = 122, 123
        a(f"""
        v_add_f32 v{RB}, v{RB}, v{RB+1}
        v_add_f32 v{RB+2}, v{RB+2}, v{RB+3}
        v_add_f32 v{S}, v{RB}, v{RB+2}
        """)
        a.extend(stat_tail(g, S, Q))
        a.extend(g.rnd(S, S) + rstd(g, AL, Q))
        a(f"v_mul_f32 v{BE}, v{S}, v{AL}")
        for k in range(6):
            a(f"v_pk_mul_f32 v[{TMP+2*k}:{TMP+2*k+1}], v[{CS+2*k}:{CS+2*k+1}], v[{AL}:{BE}] op_sel:[0,1] op_sel_hi:[1,1]")
        for k in range(6):
            a(f"v_pk_fma_f32 v[{acc+2*k}:{acc+2*k+1}], v[{acc+2*k}:{acc+2*k+1}], v[{AL}:{BE}], v[{TMP+2*k}:{TMP+2*k+1}] op_sel_hi:[1,0,1] neg_lo:[0,0,1] neg_hi:[0,0,1]")
        a.extend(gelu([acc + 2 * k for k in range(6)], TMP, [PK + 4 * (k // 2) + 2 * (i & 1) + (k & 1) for k in range(6)]))
        if i & 1:
            lsk = g.label("hs")
            for f in range(3):
                q = PK + 4 * f
                a(f"v_permlane16_swap_b32 v{q}, v{q+2}")
                a(f"v_permlane16_swap_b32 v{q+1}, v{q+3}")
            for f in range(3):
                q = PK + 4 * f
                if f:
                    a(f"s_cmp_le_u32 {S_T4}, {f}\ns_cbranch_scc1 {lsk}")
                a(f"s_add_u32 {S_T2}, {S_T3}, {f*2048}")
                a(f"buffer_store_dwordx4 v[{q}:{q+3}], v25, {srd(SWS)}, {S_T2} offen offset:{(i-1)*256} sc1")
            a(f"{lsk}:")
            a("s_nop 1")
    g.stamp()


def g4(g):
    a = g.a
    C4, ACC = 32, 48
    slots = [144 + 16 * i for i in range(7)] + [112, 128]
    a(f"""
    s_mul_i32 {S_T0}, {S_R}, {HID_R}
    s_add_u32 {S_T0}, {S_T0}, {WS_HID}
    s_add_u32 {S_T3}, {S_T0}, {42*4096}
    s_mul_i32 {S_T1}, {S_W}, {11*4096}
    s_add_u32 {S_T0}, {S_T0}, {S_T1}
    s_waitcnt vmcnt(0)
    """)
    g.stamp()

    def loads(i):
        b = slots[i % 9]
        o = [f"s_add_u32 {S_T1}, {S_T0}, {i*4096}"]
        if i == 10:
            o.append(f"s_min_u32 {S_T1}, {S_T1}, {S_T3}")
        for t in range(4):
            o.append(f"buffer_load_dwordx4 v[{b+4*t}:{b+4*t+3}], v{VDW}, {srd(SWS)}, {S_T1} offen offset:{256*t} sc1")
        return o
    for i in range(9):
        a.extend(loads(i))
    issued = 9
    for i in range(11):
        back = g.label("hchk")
        a(f"s_waitcnt vmcnt({4*(issued-1-i)})")
        a(f"{back}:")
        R = slots[i % 9]
        a(f"v_max3_u32 v30, v{R}, v{R+1}, v{R+2}")
        for j in range(3, 15, 2):
            a(f"v_max3_u32 v30, v30, v{R+j}, v{R+j+1}")
        a(f"v_max_u32 v30, v30, v{R+15}")
        a("v_cmp_eq_u32 vcc, -1, v30")
        g.retry(loads(i), back)
        for t in range(4):
            for f in range(4):
                c = f"v[{ACC+16*t+4*f}:{ACC+16*t+4*f+3}]"
                a(f"v_mfma_f32_16x16x32_bf16 {c}, {rq(w4reg(i, f))}, v[{R+4*t}:{R+4*t+3}], {c if i else '0'}")
        if issued < 11:
            a.extend(loads(issued))
            issued += 1
    g.stamp()
    a(f"""
    s_lshl_b32 {S_T0}, {S_W}, 12
    s_add_u32 {S_T0}, {S_T0}, {LB}
    v_add_u32 v22, {S_T0}, v3
    s_lshl_b32 {S_T0}, {S_W}, 14
    s_add_u32 {S_T0}, {S_T0}, {LB}
    v_add_u32 v23, {S_T0}, v3
    """)
    for t in range(4):
        for f in range(4):
            a(f"ds_write_b128 v22, v[{ACC+16*t+4*f}:{ACC+16*t+4*f+3}] offset:{t*16384 + f*1024}")
    a(f"""
    s_lshl_b32 {S_T0}, {S_R}, 16
    s_lshl_b32 {S_T1}, {S_W}, 14
    s_add_u32 {S_T0}, {S_T0}, {S_T1}
    s_lshl_b32 {S_T1}, {S_C}, 7
    s_add_u32 {S_T0}, {S_T0}, {S_T1}
    v_and_b32 v30, 1, v{V_G}
    v_lshlrev_b32 v24, 10, v{V_T}
    v_lshl_add_u32 v24, v30, 5, v24
    v_and_b32 v30, 2, v{V_G}
    v_lshl_add_u32 v24, v30, 3, v24
    s_waitcnt lgkmcnt(0)
    s_barrier
    """)
    for i in range(16):
        a(f"ds_read_b128 v[{ACC+4*i}:{ACC+4*i+3}], v23 offset:{i*1024}")
    for w in range(4):
        a(f"s_waitcnt lgkmcnt({12-4*w})")
        for k in range(8):
            a(f"v_pk_add_f32 v[{C4+2*k}:{C4+2*k+1}], v[{C4+2*k}:{C4+2*k+1}], v[{ACC+16*w+2*k}:{ACC+16*w+2*k+1}]")
    for k in range(8):
        a(f"v_cvt_pk_bf16_f32 v{112+k}, v{C4+2*k}, v{C4+2*k+1}")
    for k in range(2):
        q = 112 + 4 * k
        a(f"""
        v_permlane16_swap_b32 v{q}, v{q+2}
        v_permlane16_swap_b32 v{q+1}, v{q+3}
        buffer_store_dwordx4 v[{q}:{q+3}], v24, {srd(SOUT)}, {S_T0} offen offset:{64*k}
        """)


def gemms(g):
    a = g.a
    c0 = -2.0 * math.sqrt(2.0 / math.pi) * 1.4426950408889634
    a(f"s_mov_b32 s{S_GA}, {f32(c0)}")
    a(f"s_mov_b32 s{S_GB}, {f32(c0*0.044715)}")
    tr_addr(g)
    stage_w3_blocking(g)
    stage_w4_blocking(g)
    dma_off_img(g, 10)
    a.extend(stage_img(g, SW1, W1IMG))
    a("s_waitcnt vmcnt(0)\ns_barrier")
    g1(g)
    if g.upto >= 3:
        g2(g)
    if g.upto >= 4:
        g3(g)
    if g.upto >= 5:
        g4(g)
```

```python
import sys, math, struct
from asmdsl import Asm, interleave

NAME = "sequential_preLN__ssm_conv_s4d__mixer_s_mlp__prompt"

WS_U = 0x100000
WS_X = 0x500000
WS_H = 0x700000
WS_G = 0x900000
WS_X1 = 0xB00000
WS_HID = 0xD00000
HID_R = 172 * 1024
WS_DBG = 0x2000000
WS_SIZE = 0x2100000

LA, LB, LC = 0, 65536, 131072
TAB = LA
TROW = 528
TCH = 59 * TROW
KC = LB
KCS = 4160
UARR = KC + 8 * KCS
USTR = 4608
XARR = UARR + 2 * USTR
LN_U = LC
LN_X = LC + 8320
DEX = LC + 20480
YX = LC
STAT = LC + 28672
W1IMG, HIMG, W2IMG, XIMG = LA, LB, LB, LA

SWS, SX, SW1, SW2, SW3, SW4, SOUT = 8, 12, 16, 20, 24, 28, 32
srd = lambda n: f"s[{n}:{n+3}]"
S_B, S_W, S_P, S_R, S_C, S_TAG = "s2", "s3", "s4", "s5", "s6", "s7"
S_T0, S_T1, S_T2, S_T3, S_T4, S_T5 = "s64", "s65", "s66", "s67", "s68", "s69"
S_RETRY = "s70"
S_SEL_LO, S_SEL_HI = "s71", "s72"
S_HI16 = "s73"
STAMP0 = 76
MAXRETRY = 3000


def streg(i):
    if i < 13:
        return STAMP0 + 2 * i
    assert i < 27
    return 36 + 2 * (i - 13)


def f32(x):
    return "0x%08x" % struct.unpack("<I", struct.pack("<f", x))[0]


def vr(a, n=1):
    return f"v{a}" if n == 1 else f"v[{a}:{a+n-1}]"


def ar(a, n=1):
    return f"a{a}" if n == 1 else f"a[{a}:{a+n-1}]"


class Gen:
    def __init__(self, stamps=False, upto=99):
        self.a = Asm()
        self.tail = Asm()
        self.stamps = stamps
        self.nst = 0
        self.upto = upto
        self.lab = 0

    def label(self, base):
        self.lab += 1
        return f"L{base}{self.lab}"

    def stamp(self):
        if self.stamps:
            n = streg(self.nst)
            self.a(f"s_memrealtime s[{n}:{n+1}]")
            self.nst += 1

    def rnd(self, d, s):
        return [f"v_cvt_pk_bf16_f32 v{d}, v{s}, v{s}", f"v_lshlrev_b32 v{d}, 16, v{d}"]

    def retry(self, reissue, back):
        l = self.label("retry")
        c = self.label("cont")
        self.a(f"s_cbranch_vccnz {l}")
        self.a(f"{c}:")
        t = self.tail
        t(f"{l}:")
        t(f"s_add_u32 {S_RETRY}, {S_RETRY}, 1")
        t(f"s_cmp_gt_u32 {S_RETRY}, {MAXRETRY}")
        t(f"s_cbranch_scc1 {c}")
        t("s_nop 7")
        t.extend(reissue)
        t("s_waitcnt vmcnt(0)")
        t(f"s_branch {back}")

    def setup(self):
        a = self.a
        self.stamp()
        a(f"""
        s_load_dwordx16 s[36:51], s[0:1], 0
        s_load_dwordx8 s[52:59], s[0:1], 64
        s_load_dwordx2 s[60:61], s[0:1], 96
        s_load_dwordx2 s[62:63], s[0:1], 112
        s_cmp_ge_u32 s2, 256
        s_cbranch_scc1 Lend
        v_and_b32 v1, 63, v0
        v_lshrrev_b32 v2, 6, v0
        s_and_b32 {S_T0}, s2, 7
        s_lshr_b32 {S_T1}, s2, 3
        v_readfirstlane_b32 {S_W}, v2
        s_lshl_b32 {S_P}, {S_T0}, 5
        s_add_u32 {S_P}, {S_P}, {S_T1}
        s_lshl_b32 {S_R}, {S_T0}, 2
        s_lshr_b32 {S_T2}, s2, 6
        s_add_u32 {S_R}, {S_R}, {S_T2}
        s_and_b32 {S_C}, {S_T1}, 7
        s_mov_b32 {S_RETRY}, 0
        s_mov_b32 {S_SEL_LO}, 0x05040100
        s_mov_b32 {S_SEL_HI}, 0x07060302
        s_mov_b32 {S_HI16}, 0xffff0000
        v_lshlrev_b32 v3, 4, v1            ; lane*16
        v_lshl_add_u32 v4, v2, 11, v3
        v_lshlrev_b32 v5, 4, v0            ; tid*16
        s_lshl_b32 {S_T2}, {S_P}, 9
        v_lshl_add_u32 v6, v0, 1, {S_T2}
        v_lshrrev_b32 v7, 7, v0
        s_lshl_b32 {S_T2}, {S_P}, 2
        v_lshl_add_u32 v7, v7, 1, {S_T2}
        s_lshl_b32 {S_T3}, s2, 13
        s_mov_b32 s10, {WS_SIZE}
        s_mov_b32 s11, 0x20000
        s_mov_b32 s14, 0x200000
        s_mov_b32 s15, 0x20000
        s_mov_b32 s18, 0x80000
        s_mov_b32 s19, 0x20000
        s_mov_b32 s22, 0x80000
        s_mov_b32 s23, 0x20000
        s_mov_b32 s26, {512*1376*2}
        s_mov_b32 s27, 0x20000
        s_mov_b32 s30, {512*1376*2}
        s_mov_b32 s31, 0x20000
        s_mov_b32 s34, 0x200000
        s_mov_b32 s35, 0x20000
        s_waitcnt lgkmcnt(0)
        s_mov_b32 s12, s36
        s_mov_b32 s13, s37
        buffer_load_dwordx4 v[32:35], v4, {srd(SX)}, {S_T3} offen
        buffer_load_dwordx4 v[36:39], v4, {srd(SX)}, {S_T3} offen offset:1024
        s_load_dword {S_TAG}, s[62:63], 0
        global_load_ushort v40, v6, s[38:39]
        global_load_ushort v41, v6, s[40:41]
        global_load_ushort v42, v6, s[42:43]
        global_load_ushort v43, v6, s[44:45]
        global_load_ushort v44, v7, s[46:47]
        global_load_ushort v45, v7, s[48:49]
        s_mov_b32 s8, s62
        s_mov_b32 s9, s63
        s_mov_b32 s16, s52
        s_mov_b32 s17, s53
        s_mov_b32 s20, s54
        s_mov_b32 s21, s55
        s_mov_b32 s24, s56
        s_mov_b32 s25, s57
        s_mov_b32 s28, s58
        s_mov_b32 s29, s59
        s_mov_b32 s32, s60
        s_mov_b32 s33, s61
        """)
        self.stamp()
        a(f"""
        v_mov_b32 v8, -1
        v_mov_b32 v9, -1
        v_mov_b32 v10, -1
        v_mov_b32 v11, -1
        v_add_u32 v12, 4096, v5
        s_add_u32 {S_T0}, {S_T3}, {WS_X}
        s_lshl_b32 {S_T1}, {S_P}, 13
        s_add_u32 {S_T1}, {S_T1}, {WS_H}
        buffer_store_dwordx4 v[8:11], v5, {srd(SWS)}, {S_T0} offen sc1
        buffer_store_dwordx4 v[8:11], v12, {srd(SWS)}, {S_T0} offen sc1
        buffer_store_dwordx4 v[8:11], v5, {srd(SWS)}, {S_T1} offen sc1
        buffer_store_dwordx4 v[8:11], v12, {srd(SWS)}, {S_T1} offen sc1
        """)
        a(f"""
        v_mov_b32 v16, 0
        v_mov_b32 v17, 0
        v_lshlrev_b32 v13, 2, v0
        v_and_b32 v14, 0x1ff, v13
        v_lshrrev_b32 v15, 7, v0
        v_mul_u32_u24 v15, {USTR}, v15
        v_add_u32 v14, v14, v15
        v_add_u32 v14, {UARR}, v14
        ds_write_b32 v14, v16
        v_and_b32 v14, 15, v0
        v_bfe_u32 v15, v0, 4, 3
        v_mul_u32_u24 v15, {KCS}, v15
        v_lshl_add_u32 v14, v14, 2, v15
        v_add_u32 v14, {KC + 4096}, v14
        ds_write_b32 v14, v16
        """)

    def p0_ln(self):
        a = self.a
        X0, X1 = 32, 36
        F0, F1 = 48, 56
        S0, S1, Q0, Q1, ONE = 64, 65, 66, 67, 68
        Q = 72
        XQ = 88
        a(f"""
        v_mov_b32 v{ONE}, 0x3f803f80
        v_mov_b32 v{S0}, 0
        v_mov_b32 v{S1}, 0
        v_mov_b32 v{Q0}, 0
        v_mov_b32 v{Q1}, 0
        s_mul_i32 {S_T0}, {S_W}, 2080
        v_add_u32 v13, {S_T0}, v3
        v_add_u32 v13, {LN_U}, v13
        v_and_b32 v14, 3, v0
        v_mul_u32_u24 v14, 2080, v14
        v_and_b32 v15, 0xfc, v0
        v_add_u32 v14, v14, v15
        v_add_u32 v14, {LN_U}, v14
        v_and_b32 v15, 1, v0
        v_mul_u32_u24 v15, 4160, v15
        v_and_b32 v16, 0xfe, v0
        v_lshl_add_u32 v15, v16, 1, v15
        v_add_u32 v15, {LN_X}, v15
        s_waitcnt lgkmcnt(0)
        s_add_u32 {S_TAG}, {S_TAG}, 0x9E3779B9
        """)
        for k in range(4):
            a(f"v_mov_b32 v{Q+4*k+1}, {S_TAG}")
            a(f"v_mov_b32 v{Q+4*k+3}, {S_TAG}")
        a("s_waitcnt vmcnt(10)")
        self.stamp()
        for i in range(4):
            a(f"v_dot2c_f32_bf16 v{S0}, v{X0+i}, v{ONE}")
            a(f"v_dot2c_f32_bf16 v{Q0}, v{X0+i}, v{X0+i}")
            a(f"v_dot2c_f32_bf16 v{S1}, v{X1+i}, v{ONE}")
            a(f"v_dot2c_f32_bf16 v{Q1}, v{X1+i}, v{X1+i}")
        unp = []
        for (X, F) in ((X0, F0), (X1, F1)):
            for i in range(4):
                unp.append(f"v_lshlrev_b32 v{F+2*i}, 16, v{X+i}")
                unp.append(f"v_and_b32 v{F+2*i+1}, {S_HI16}, v{X+i}")
        a(f"ds_write_b128 v13, v[{X0}:{X0+3}] offset:8320")
        a(f"ds_write_b128 v13, v[{X1}:{X1+3}] offset:{8320+1040}")
        dpp = "row_mask:0xf bank_mask:0xf"
        chain = [
            f"v_permlane32_swap_b32 v{S0}, v{Q0}",
            f"v_permlane32_swap_b32 v{S1}, v{Q1}",
            f"v_add_f32 v{S0}, v{S0}, v{Q0}",
            f"v_add_f32 v{S1}, v{S1}, v{Q1}",
            "U", "U",
            f"v_permlane16_swap_b32 v{S0}, v{S1}",
            "U",
            f"v_add_f32 v{S0}, v{S0}, v{S1}",
            "U", "U",
            f"v_add_f32_dpp v{S0}, v{S0}, v{S0} quad_perm:[1,0,3,2] {dpp}",
            "U", "U",
            f"v_add_f32_dpp v{S0}, v{S0}, v{S0} quad_perm:[2,3,0,1] {dpp}",
            "U", "U",
            f"v_add_f32_dpp v{S0}, v{S0}, v{S0} row_half_mirror {dpp}",
            "U", "U",
            f"v_add_f32_dpp v{S0}, v{S0}, v{S0} row_mirror {dpp}",
            f"v_mul_f32 v{S0}, {f32(1/512)}, v{S0}",
            f"v_mov_b32 v{Q0}, v{S0}",
            "U", "U",
            f"v_permlane32_swap_b32 v{S0}, v{Q0}",
            "U",
            f"v_fma_f32 v{Q0}, -v{S0}, v{S0}, v{Q0}",
            f"v_max_f32 v{Q0}, 0, v{Q0}",
        ] + self.rnd(Q0, Q0) + [f"v_add_f32 v{Q0}, {f32(1e-5)}, v{Q0}"] + self.rnd(Q0, Q0) + [
            f"v_sqrt_f32 v{Q0}, v{Q0}"] + self.rnd(S0, S0) + self.rnd(Q0, Q0) + [
            f"v_rcp_f32 v{Q0}, v{Q0}", "U",
            f"v_mul_f32 v{S0}, v{S0}, v{Q0}", "U",
        ]
        for c in chain:
            if c == "U":
                if unp:
                    a(unp.pop(0))
            else:
                a(c)
        a.extend(unp)
        a(f"""
        v_readlane_b32 {S_T0}, v{Q0}, 0
        v_readlane_b32 {S_T2}, v{Q0}, 16
        v_readlane_b32 {S_T1}, v{S0}, 0
        v_readlane_b32 {S_T3}, v{S0}, 16
        """)
        for (X, F, s) in ((X0, F0, 64), (X1, F1, 66)):
            for i in range(4):
                a(f"v_pk_fma_f32 v[{F+2*i}:{F+2*i+1}], v[{F+2*i}:{F+2*i+1}], s[{s}:{s+1}], s[{s}:{s+1}] op_sel:[0,0,1] op_sel_hi:[1,0,1] neg_lo:[0,0,1] neg_hi:[0,0,1]")
            for i in range(4):
                a(f"v_cvt_pk_bf16_f32 v{X+i}, v{F+2*i}, v{F+2*i+1}")
        a(f"""
        ds_write_b128 v13, v[{X0}:{X0+3}]
        ds_write_b128 v13, v[{X1}:{X1+3}] offset:1040
        s_lshl_b32 {S_T0}, s2, 14
        s_add_u32 {S_T0}, {S_T0}, {WS_U}
        s_add_u32 {S_T1}, {S_T0}, 8192
        s_lshl_b32 {S_T2}, s2, 13
        s_add_u32 {S_T2}, {S_T2}, {WS_X}
        s_waitcnt lgkmcnt(0) vmcnt(0)
        s_barrier
        """)
        for k in range(4):
            a(f"ds_read_b32 v{Q+4*k}, v14 offset:{256*k}")
            a(f"ds_read_b32 v{Q+4*k+2}, v14 offset:{256*k+1040}")
        for k in range(4):
            a(f"s_waitcnt lgkmcnt({6-2*k})")
            a(f"buffer_store_dwordx4 v[{Q+4*k}:{Q+4*k+3}], {'v5' if k%2==0 else 'v12'}, {srd(SWS)}, {S_T0 if k<2 else S_T1} offen sc1")
        for k in range(2):
            for i in range(4):
                a(f"ds_read_b32 v{XQ+4*k+i}, v15 offset:{512*k+1040*i}")
        for k in range(2):
            a(f"s_waitcnt lgkmcnt({4-4*k})")
            a(f"buffer_store_dwordx4 v[{XQ+4*k}:{XQ+4*k+3}], {'v5' if k==0 else 'v12'}, {srd(SWS)}, {S_T2} offen sc1")
        self.stamp()

    def cmul(self, d, x, y, t):
        return [f"v_pk_mul_f32 v[{t}:{t+1}], v[{x}:{x+1}], v[{y}:{y+1}] op_sel:[1,1] op_sel_hi:[1,0]",
                f"v_pk_fma_f32 v[{d}:{d+1}], v[{x}:{x+1}], v[{y}:{y+1}], v[{t}:{t+1}] op_sel:[0,0,0] op_sel_hi:[0,1,1] neg_lo:[0,0,1]"]

    def u_loads(self):
        out = []
        for k in range(4):
            out.append(f"s_add_u32 {S_T5}, {S_T4}, {k << 20}")
            out.append(f"buffer_load_dwordx4 v[{96+4*k}:{99+4*k}], v18, {srd(SWS)}, {S_T5} offen sc1")
        return out

    def kgen(self):
        a = self.a
        LOG2E = 1.4426950408889634
        for i in range(40, 46):
            a(f"v_lshlrev_b32 v{i}, 16, v{i}")
        LR, FR = 46, 47
        a(f"""
        v_mul_f32 v40, {f32(LOG2E)}, v40
        v_mul_f32 v44, {f32(LOG2E)}, v44
        v_exp_f32 v40, v40
        v_exp_f32 v44, v44
        v_mov_b32 v19, v45
        """)
        a.extend(self.rnd(40, 40) + self.rnd(44, 44))
        a(f"""
        v_mul_f32 v{LR}, v40, v44
        v_mul_f32 v{FR}, v41, v44
        v_add_f32 v44, v44, v44
        v_mul_f32 v{LR}, {f32(-LOG2E)}, v{LR}
        v_mul_f32 v{FR}, 0.15915494, v{FR}
        """)
        T = 32
        C0 = 48
        W1, W2p, W4p = 66, 68, 70
        Gq = 72
        Fj = 112
        a(f"v_mul_f32 v{C0}, v42, v44")
        a(f"v_mul_f32 v{C0+1}, v43, v44")
        a(f"""
        v_lshrrev_b32 v16, 7, v0
        v_mul_u32_u24 v16, {TCH}, v16
        v_and_b32 v17, 127, v0
        v_lshl_add_u32 v16, v17, 2, v16
        """)
        if TAB:
            a(f"v_add_u32 v16, {TAB}, v16")
        anch = [(1.0, W1, False), (8.0, Fj, True), (256.0, Gq, False)]
        for i, (p, d, conj) in enumerate(anch):
            a(f"v_mul_f32 v{T+2*i}, {f32(p)}, v{LR}")
            a(f"v_mul_f32 v{T+2*i+1}, {f32(-p if conj else p)}, v{FR}")
        for i in range(3):
            a(f"v_fract_f32 v{T+2*i+1}, v{T+2*i+1}")
            a(f"v_exp_f32 v{T+2*i}, v{T+2*i}")
        for i, (p, d, conj) in enumerate(anch):
            a(f"v_cos_f32 v{d}, v{T+2*i+1}")
            a(f"v_sin_f32 v{d+1}, v{T+2*i+1}")
        for i, (p, d, conj) in enumerate(anch):
            a(f"v_pk_mul_f32 v[{d}:{d+1}], v[{d}:{d+1}], v[{T+2*i}:{T+2*i+1}] op_sel_hi:[1,0]")
        F = lambda j: Fj + 2 * (j - 1)
        G = lambda q: Gq + 2 * (q - 1)
        C = lambda e: C0 + 2 * e
        self.cv = 0

        def put(row, reg):
            cv = 86 + (self.cv % 8)
            self.cv += 1
            return [f"v_cvt_pk_bf16_f32 v{cv}, v{reg}, v{reg+1}", f"ds_write_b32 v16, v{cv} offset:{row*TROW}"]

        def batch(muls):
            out = []
            for i in range(0, len(muls), 4):
                g = muls[i:i + 4]
                ins = [self.cmul(d, x, y, T + 2 * k) for k, (d, x, y) in enumerate(g)]
                out += [x[0] for x in ins] + [x[1] for x in ins]
            return out
        a("v_mov_b32 v86, 0x3f80")
        a("ds_write_b32 v16, v86")
        self.cv = 1
        a.extend(batch([(F(2), F(1), F(1)), (W2p, W1, W1), (G(2), G(1), G(1)), (C(1), C(0), W1)]))
        a.extend(put(1, F(1)) + put(32, C(0)))
        a.extend(batch([(F(3), F(2), F(1)), (F(4), F(2), F(2)), (W4p, W2p, W2p), (G(3), G(2), G(1)),
                        (G(4), G(2), G(2)), (C(2), C(0), W2p), (C(3), C(1), W2p)]))
        a.extend(put(2, F(2)) + put(33, C(1)))
        a.extend(batch([(F(4 + j), F(4), F(j)) for j in range(1, 5)] + [(C(4 + e), C(e), W4p) for e in range(4)]
                       + [(G(4 + q), G(4), G(q)) for q in range(1, 4)]))
        a.extend(put(3, F(3)) + put(4, F(4)) + put(34, C(2)) + put(35, C(3)))
        a.extend(batch([(C(8), C(4), W4p)] + [(F(8 + j), F(8), F(j)) for j in range(1, 9)]))
        for j in range(5, 9):
            a.extend(put(j, F(j)))
        for e in range(4, 8):
            a.extend(put(32 + e, C(e)))
        for j in range(9, 17):
            a.extend(put(j, F(j)))
        a(f"""
        v_lshrrev_b32 v17, 2, v0
        v_and_b32 v18, 3, v0
        v_lshlrev_b32 v18, 4, v18
        v_lshl_add_u32 v18, v17, 14, v18
        s_lshl_b32 {S_T4}, {S_P}, 6
        s_add_u32 {S_T4}, {S_T4}, {WS_U}
        """)
        rest = [(16 + j, F(j), F(16), F(j)) for j in range(1, 16)]
        erows = []
        row = 40
        self.erow = {(0, e): 32 + e for e in range(8)}
        for q, ds in ((1, (0, 2, 4, 6, 8)), (2, (0, 4, 8)), (3, (0, 4, 8)), (4, (0, 8)), (5, (0, 8)), (6, (0, 8)), (7, (0, 8))):
            for d in ds:
                self.erow[(q, d)] = row
                erows.append((row, G(q), C(d)))
                row += 1
        assert row == 59
        for i in range(0, 15, 4):
            g = rest[i:i + 4]
            a.extend(batch([(d, x, y) for (_, d, x, y) in g]))
            for (r_, d, x, y) in g:
                a.extend(put(r_, d))
        for i in range(0, len(erows), 4):
            g = erows[i:i + 4]
            a.extend(batch([(F(1 + k), x, y) for k, (_, x, y) in enumerate(g)]))
            for k, (r_, x, y) in enumerate(g):
                a.extend(put(r_, F(1 + k)))
        a("s_waitcnt vmcnt(0)")
        a.extend(self.u_loads())
        d1 = [0, 0, 2, 4, 4, 4, 6, 8]
        rho = {}
        for hi in range(2):
            for i in range(16):
                if i < 8:
                    key = (0, i) if hi == 0 else (1, d1[i])
                elif i < 11:
                    key = (2 + hi, 4 * (i - 8))
                elif i < 13:
                    key = (4 + hi, 8 * (i - 11))
                elif i < 15:
                    key = (6 + hi, 8 * (i - 13))
                else:
                    key = (0, 0)
                rho[(i & 3) + 8 * (i >> 2) + 4 * hi] = self.erow[key] - 32
        lo = [sum((rho[m + 8 * k] & 15) << (4 * m) for m in range(8)) for k in range(4)]
        hib = sum((rho[m] >> 4) << m for m in range(32))
        a(f"""
        v_and_b32 v32, 31, v1              ; m
        v_lshrrev_b32 v33, 3, v32          ; k
        v_mov_b32 v34, {hex(lo[0])}
        v_mov_b32 v35, {hex(lo[1])}
        v_cmp_eq_u32 vcc, 1, v33
        v_cndmask_b32 v34, v34, v35, vcc
        v_mov_b32 v35, {hex(lo[2])}
        v_cmp_eq_u32 vcc, 2, v33
        v_cndmask_b32 v34, v34, v35, vcc
        v_mov_b32 v35, {hex(lo[3])}
        v_cmp_eq_u32 vcc, 3, v33
        v_cndmask_b32 v34, v34, v35, vcc
        v_and_b32 v33, 7, v32
        v_lshlrev_b32 v33, 2, v33
        v_bfe_u32 v34, v34, v33, 4
        v_mov_b32 v35, {hex(hib)}
        v_bfe_u32 v35, v35, v32, 1
        v_lshl_add_u32 v34, v35, 4, v34    ; rho
        v_add_u32 v34, 32, v34
        v_mul_u32_u24 v34, {TROW}, v34
        v_mul_u32_u24 v35, {TROW}, v32
        s_lshr_b32 {S_T0}, {S_W}, 1
        s_mul_i32 {S_T0}, {S_T0}, {TCH}
        s_and_b32 {S_T1}, {S_W}, 1
        s_lshl_b32 {S_T2}, {S_T1}, 8
        s_add_u32 {S_T0}, {S_T0}, {S_T2}
        s_add_u32 {S_T0}, {S_T0}, {TAB}
        v_lshrrev_b32 v33, 5, v1
        v_lshl_add_u32 v33, v33, 4, {S_T0}
        v_add_u32 v34, v34, v33            ; A addr
        v_add_u32 v35, v35, v33            ; B addr
        s_waitcnt lgkmcnt(0)
        """)
        AF, BF, D = 48, 112, 80
        for s in range(8):
            a(f"ds_read_b128 v[{AF+4*s}:{AF+4*s+3}], v34 offset:{32*s}")
            a(f"ds_read_b128 v[{BF+4*s}:{BF+4*s+3}], v35 offset:{32*s}")
        for s in range(8):
            a(f"s_waitcnt lgkmcnt({14-2*s})")
            a(f"v_mfma_f32_32x32x16_bf16 v[{D}:{D+15}], v[{AF+4*s}:{AF+4*s+3}], v[{BF+4*s}:{BF+4*s+3}], {'0' if s==0 else f'v[{D}:{D+15}]'}")
        lh1, lj = self.label("kh"), self.label("kj")
        a(f"""
        s_lshl_b32 {S_T0}, {S_W}, 11
        s_add_u32 {S_T0}, {S_T0}, {DEX}
        v_add_u32 v32, {S_T0}, v3
        v_xor_b32 v33, 2048, v32
        s_lshr_b32 {S_T0}, {S_W}, 1
        s_mul_i32 {S_T0}, {S_T0}, {4*KCS}
        s_add_u32 {S_T0}, {S_T0}, {KC + 255*16}
        v_sub_u32 v34, {S_T0}, v3
        v_and_b32 v35, 1, v1
        v_cmp_eq_u32 vcc, 1, v35
        s_cmp_eq_u32 {S_T1}, 1
        s_cbranch_scc1 {lh1}
        s_nop 7
        ds_write_b128 v32, v[{D+8}:{D+11}]
        ds_write_b128 v32, v[{D+12}:{D+15}] offset:1024
        s_waitcnt lgkmcnt(0)
        s_barrier
        ds_read_b128 v[48:51], v33
        ds_read_b128 v[52:55], v33 offset:1024
        s_waitcnt lgkmcnt(0)
        """)
        for i in range(4):
            a(f"v_pk_add_f32 v[{D+2*i}:{D+2*i+1}], v[{D+2*i}:{D+2*i+1}], v[{48+2*i}:{49+2*i}]")
        for d in range(4):
            a(f"v_cvt_pk_bf16_f32 v{56+d}, v{D+7-2*d}, v{D+6-2*d}")
        a(f"""
        ds_write_b128 v34, v[56:59]
        s_branch {lj}
        {lh1}:
        s_nop 7
        ds_write_b128 v32, v[{D}:{D+3}]
        ds_write_b128 v32, v[{D+4}:{D+7}] offset:1024
        s_waitcnt lgkmcnt(0)
        s_barrier
        ds_read_b128 v[48:51], v33
        ds_read_b128 v[52:55], v33 offset:1024
        v_subrev_u32 v34, 3072, v34
        s_waitcnt lgkmcnt(0)
        """)
        for i in range(4):
            a(f"v_pk_add_f32 v[{D+8+2*i}:{D+9+2*i}], v[{D+8+2*i}:{D+9+2*i}], v[{48+2*i}:{49+2*i}]")
        x0, x4, x8 = D + 8, D + 9, D + 10
        a(f"""
        v_cvt_pk_bf16_f32 v56, v{x8}, v{x8}
        v_cvt_pk_bf16_f32 v57, v{x4}, v{x4}
        v_cvt_pk_bf16_f32 v58, v{x4}, v{x0}
        v_cvt_pk_bf16_f32 v59, v{x0}, v{x0}
        ds_write_b128 v34, v[56:59] offset:2048
        """)
        for k, (y0, y8) in enumerate(((D + 11, D + 12), (D + 13, D + 14))):
            o = 60 + 4 * k
            a(f"""
            v_cndmask_b32 v48, v{y0}, v{y8}, vcc
            v_cvt_pk_bf16_f32 v{o}, v{y8}, v{y8}
            v_cvt_pk_bf16_f32 v{o+1}, v{y8}, v48
            v_cvt_pk_bf16_f32 v{o+2}, v{y0}, v{y0}
            v_cvt_pk_bf16_f32 v{o+3}, v{y0}, v{y0}
            ds_write_b128 v34, v[{o}:{o+3}] offset:{1024 - 1024*k}
            """)
        a(f"""
        {lj}:
        v_add_u32 v32, {KC}, v5
        s_waitcnt lgkmcnt(0)
        s_barrier
        """)
        for ch in range(2):
            b = 48 + 8 * ch
            a(f"ds_read_b128 v[{b}:{b+3}], v32 offset:{ch*4*KCS}")
            a(f"ds_read_b64 v[{b+4}:{b+5}], v32 offset:{ch*4*KCS+16}")
        for ch in range(2):
            b = 48 + 8 * ch
            o = 64 + 12 * ch
            a(f"s_waitcnt lgkmcnt({2 if ch==0 else 3})")
            for i in range(4):
                a(f"v_alignbit_b32 v{o+i}, v{b+i+1}, v{b+i}, 16")
            a(f"ds_write_b128 v32, v[{o}:{o+3}] offset:{ch*4*KCS+KCS}")
            a(f"v_pk_mov_b32 v[{o+4}:{o+5}], v[{b}:{b+1}], v[{b+2}:{b+3}] op_sel:[1,0]")
            a(f"v_pk_mov_b32 v[{o+6}:{o+7}], v[{b+2}:{b+3}], v[{b+4}:{b+5}] op_sel:[1,0]")
            a(f"ds_write_b128 v32, v[{o+4}:{o+7}] offset:{ch*4*KCS+2*KCS}")
            for i in range(4):
                a(f"v_alignbit_b32 v{o+8+i}, v{b+i+2}, v{b+i+1}, 16")
            a(f"ds_write_b128 v32, v[{o+8}:{o+11}] offset:{ch*4*KCS+3*KCS}")
        self.stamp()

    def x_loads(self):
        out = []
        for k in range(2):
            out.append(f"s_add_u32 {S_T5}, {S_T4}, {k << 20}")
            out.append(f"buffer_load_dwordx4 v[{128+4*k}:{131+4*k}], v18, {srd(SWS)}, {S_T5} offen sc1")
        return out

    def edge1(self):
        a = self.a
        back = self.label("uchk")
        a(f"""
        v_lshlrev_b32 v17, 2, v0
        v_add_u32 v17, {UARR + 512}, v17
        s_waitcnt vmcnt(0)
        {back}:
        v_xor_b32 v32, {S_TAG}, v97
        """)
        for i in (99, 101, 103, 105, 107, 109, 111):
            a(f"v_bitop3_b32 v32, v32, {S_TAG}, v{i} bitop3:0xf6")
        a("v_cmp_ne_u32 vcc, 0, v32")
        self.retry(self.u_loads(), back)
        self.stamp()
        for k in range(4):
            b = 96 + 4 * k
            a(f"v_perm_b32 v{b+1}, v{b+2}, v{b}, {S_SEL_LO}")
            a(f"v_perm_b32 v{b+3}, v{b+2}, v{b}, {S_SEL_HI}")
            a(f"ds_write2st64_b32 v17, v{b+1}, v{b+3} offset0:{4*k} offset1:{4*k+USTR//256}")
        a(f"""
        v_lshrrev_b32 v32, 1, v0
        v_and_b32 v18, 1, v0
        v_lshlrev_b32 v18, 4, v18
        v_lshl_add_u32 v18, v32, 13, v18
        s_lshl_b32 {S_T4}, {S_P}, 5
        s_add_u32 {S_T4}, {S_T4}, {WS_X}
        """)
        a.extend(self.x_loads())

    def conv(self):
        a = self.a
        A, B, ACC = 32, 64, 96
        a(f"""
        v_and_b32 v20, 15, v1              ; j / n
        v_lshrrev_b32 v21, 4, v1           ; g
        s_lshr_b32 {S_T0}, {S_W}, 1        ; ch
        s_and_b32 {S_T1}, {S_W}, 1         ; half
        v_and_b32 v22, 3, v20
        v_sub_u32 v22, 3, v22              ; s = 3 - (j&3)
        v_mul_u32_u24 v22, {KCS}, v22
        v_lshlrev_b32 v23, 1, v21
        v_lshrrev_b32 v24, 2, v20
        v_sub_u32 v23, v23, v24            ; 2g - (j>>2)
        v_lshl_add_u32 v22, v23, 3, v22
        s_mul_i32 {S_T2}, {S_T0}, {4*KCS}
        s_lshl_b32 {S_T3}, {S_T1}, 8
        s_sub_u32 {S_T2}, {S_T2}, {S_T3}
        s_add_u32 {S_T2}, {S_T2}, {KC + 2*2028 - 7*512 - 3*64}
        v_add_u32 v22, {S_T2}, v22
        v_lshlrev_b32 v23, 5, v20
        v_lshl_add_u32 v23, v21, 4, v23
        s_mul_i32 {S_T2}, {S_T0}, {USTR}
        s_sub_u32 {S_T2}, {S_T2}, {S_T3}
        s_add_u32 {S_T2}, {S_T2}, {UARR + 512 - 32 - 3*64}
        v_add_u32 v23, {S_T2}, v23
        s_waitcnt lgkmcnt(0)
        s_barrier
        """)
        self.stamp()
        lskip = self.label("ep")
        a(f"""
        s_or_b32 {S_T2}, s2, {S_W}
        s_cmp_lg_u32 {S_T2}, 0
        s_cbranch_scc1 {lskip}
        v_mov_b32 v24, {S_TAG}
        v_mov_b32 v25, 0
        s_mov_b64 exec, 1
        buffer_store_dword v24, v25, {srd(SWS)}, 0 offen sc1
        s_mov_b64 exec, -1
        {lskip}:
        """)

        def ldA(i, rho):
            o = (7 - i) * 512 + (3 - rho) * 64
            return [f"ds_read_b64 v[{A+4*i}:{A+4*i+1}], v22 offset:{o}", f"ds_read_b64 v[{A+4*i+2}:{A+4*i+3}], v22 offset:{o+8}"]

        def ldB(i, rho):
            return [f"ds_read_b128 v[{B+4*i}:{B+4*i+3}], v23 offset:{i*512 + (3-rho)*64}"]
        order = []
        for m in (7, 6, 5, 4):
            order += [(m, k) for k in range(8 - m)] + [(k, m) for k in range(8 - m)]
        for m in range(4):
            order += [(m, k) for k in range(m, 4)] + [(k, m) for k in range(m + 1, 4)]
        assert len(order) == 36 and len(set(order)) == 36
        issued = []
        def issue(tag, ins):
            for x in ins:
                a(x)
                issued.append(tag)
        first = [("A", 7), ("B", 0), ("A", 0), ("B", 7), ("A", 6), ("B", 1), ("B", 6), ("A", 1), ("A", 5), ("B", 2), ("B", 5), ("A", 2), ("A", 4), ("B", 3), ("B", 4), ("A", 3)]
        pend = [(k, i, 0) for (k, i) in first]
        done_wait = -1
        touched = set()
        side = list(self.conv_side())
        for rho in range(4):
            lastuse = {}
            for n, (x, y) in enumerate(order):
                lastuse[("A", x)] = n
                lastuse[("B", y)] = n
            for n, (x, y) in enumerate(order):
                budget = 99 if (rho == 0 and n == 0) else 2
                while pend and budget > 0 and len(issued) - 1 - done_wait <= 12:
                    k, i, r_ = pend.pop(0)
                    issue((k, i, r_), ldA(i, r_) if k == "A" else ldB(i, r_))
                    budget -= 2 if k == "A" else 1
                for tag in (("A", x, rho), ("B", y, rho)):
                    while tag not in issued:
                        k, i, r_ = pend.pop(0)
                        issue((k, i, r_), ldA(i, r_) if k == "A" else ldB(i, r_))
                idx = max(len(issued) - 1 - issued[::-1].index(t) for t in (("A", x, rho), ("B", y, rho)))
                if idx > done_wait:
                    cnt = len(issued) - 1 - idx
                    assert cnt <= 15
                    a(f"s_waitcnt lgkmcnt({cnt})")
                    done_wait = idx
                t = x + y
                c = f"v[{ACC+4*t}:{ACC+4*t+3}]"
                a(f"v_mfma_f32_16x16x32_bf16 {c}, v[{A+4*x}:{A+4*x+3}], v[{B+4*y}:{B+4*y+3}], {c if t in touched else '0'}")
                touched.add(t)
                if side and n % 3 == 2:
                    a(side.pop(0))
                if rho < 3:
                    if lastuse[("A", x)] == n:
                        pend.append(("A", x, rho + 1))
                    if lastuse[("B", y)] == n:
                        pend.append(("B", y, rho + 1))
        a.extend(side)
        self.stamp()
        back = self.label("xchk")
        a(f"""
        v_lshlrev_b32 v17, 3, v0
        v_add_u32 v17, {XARR}, v17
        s_waitcnt vmcnt(0)
        {back}:
        v_max3_u32 v32, v128, v129, v130
        v_max3_u32 v32, v32, v131, v132
        v_max3_u32 v32, v32, v133, v134
        v_max_u32 v32, v32, v135
        v_cmp_eq_u32 vcc, -1, v32
        """)
        self.retry(self.x_loads(), back)
        for k in range(2):
            b = 128 + 4 * k
            o = 32 + 4 * k
            a(f"""
            v_perm_b32 v{o}, v{b+1}, v{b}, {S_SEL_LO}
            v_perm_b32 v{o+1}, v{b+3}, v{b+2}, {S_SEL_LO}
            v_perm_b32 v{o+2}, v{b+1}, v{b}, {S_SEL_HI}
            v_perm_b32 v{o+3}, v{b+3}, v{b+2}, {S_SEL_HI}
            ds_write_b64 v17, v[{o}:{o+1}] offset:{2048*k}
            ds_write_b64 v17, v[{o+2}:{o+3}] offset:{2048*k+4096}
            """)
        lns = self.label("ns")
        a(f"""
        s_cmp_eq_u32 {S_T1}, 0
        s_cbranch_scc1 {lns}
        """)
        for i in range(16):
            a(f"v_swap_b32 v{ACC+i}, v{ACC+16+i}")
        a(f"""
        {lns}:
        s_lshl_b32 {S_T2}, {S_W}, 12
        s_add_u32 {S_T2}, {S_T2}, {YX}
        v_add_u32 v24, {S_T2}, v3
        v_xor_b32 v25, 4096, v24
        """)
        for i in range(4):
            a(f"ds_write_b128 v24, v[{ACC+16+4*i}:{ACC+19+4*i}] offset:{1024*i}")
        a(f"""
        v_lshlrev_b32 v26, 5, v20
        v_lshl_add_u32 v26, v21, 3, v26        ; 32n + 8g
        s_lshl_b32 {S_T3}, {S_T1}, 11
        s_mul_i32 {S_T2}, {S_T0}, {USTR}
        s_add_u32 {S_T2}, {S_T2}, {S_T3}
        s_add_u32 {S_T2}, {S_T2}, {UARR + 512}
        v_add_u32 v27, {S_T2}, v26
        s_lshl_b32 {S_T2}, {S_W}, 11
        s_add_u32 {S_T2}, {S_T2}, {XARR}
        v_add_u32 v26, {S_T2}, v26
        v_and_b32 v28, 1, v21
        v_lshlrev_b32 v28, 9, v28
        v_lshl_add_u32 v28, v20, 5, v28
        v_and_b32 v29, 2, v21
        v_lshl_add_u32 v28, v29, 3, v28
        s_lshl_b32 {S_T2}, {S_P}, 13
        s_lshl_b32 {S_T3}, {S_W}, 11
        s_add_u32 {S_T2}, {S_T2}, {S_T3}
        s_add_u32 {S_T2}, {S_T2}, {WS_H}
        s_waitcnt lgkmcnt(0)
        s_barrier
        """)
        Y, Uu, Xx, T = 32, 48, 56, 64
        for i in range(4):
            a(f"ds_read_b64 v[{Uu+2*i}:{Uu+2*i+1}], v27 offset:{512*i}")
            a(f"ds_read_b64 v[{Xx+2*i}:{Xx+2*i+1}], v26 offset:{512*i}")
            a(f"ds_read_b128 v[{Y+4*i}:{Y+4*i+3}], v25 offset:{1024*i}")
        a("v_mov_b32 v18, v19")
        for i in range(4):
            a(f"s_waitcnt lgkmcnt({9-3*i})")
            for k in range(2):
                r0 = ACC + 4 * i + 2 * k
                a(f"""
                v_lshlrev_b32 v{T}, 16, v{Uu+2*i+k}
                v_and_b32 v{T+1}, {S_HI16}, v{Uu+2*i+k}
                v_lshlrev_b32 v{T+2}, 16, v{Xx+2*i+k}
                v_and_b32 v{T+3}, {S_HI16}, v{Xx+2*i+k}
                v_pk_add_f32 v[{r0}:{r0+1}], v[{r0}:{r0+1}], v[{Y+4*i+2*k}:{Y+4*i+2*k+1}]
                v_pk_fma_f32 v[{T}:{T+1}], v[{T}:{T+1}], v[18:19], v[{T+2}:{T+3}]
                v_pk_add_f32 v[{r0}:{r0+1}], v[{r0}:{r0+1}], v[{T}:{T+1}]
                v_cvt_pk_bf16_f32 v{72+2*i+k}, v{r0}, v{r0+1}
                """)
        for k in range(2):
            q = 72 + 4 * k
            a(f"""
            v_permlane16_swap_b32 v{q}, v{q+2}
            v_permlane16_swap_b32 v{q+1}, v{q+3}
            buffer_store_dwordx4 v[{q}:{q+3}], v28, {srd(SWS)}, {S_T2} offen offset:{1024*k} sc1
            """)
        self.stamp()

    def conv_side(self):
        out = [f"s_mul_i32 {S_T2}, s2, 40960", f"s_add_u32 {S_T2}, {S_T2}, {WS_G}"]
        for k in range(5):
            out.append(f"buffer_store_dwordx4 v[8:11], v5, {srd(SWS)}, {S_T2} offen sc1")
            out.append(f"buffer_store_dwordx4 v[8:11], v12, {srd(SWS)}, {S_T2} offen sc1")
            out.append(f"s_add_u32 {S_T2}, {S_T2}, 8192")
        return out

    def finish(self):
        a = self.a
        if self.stamps:
            self.stamp()
            a("s_waitcnt lgkmcnt(0) vmcnt(0)")
            for i in range(self.nst):
                a(f"v_writelane_b32 v32, s{streg(i)}, {i}")
            a(f"""
            v_writelane_b32 v32, {S_RETRY}, 31
            s_lshl_b32 {S_T0}, s2, 2
            s_add_u32 {S_T0}, {S_T0}, {S_W}
            s_lshl_b32 {S_T0}, {S_T0}, 7
            s_add_u32 {S_T0}, {S_T0}, {WS_DBG}
            v_lshlrev_b32 v33, 2, v1
            s_mov_b32 exec_hi, 0
            buffer_store_dword v32, v33, {srd(SWS)}, {S_T0} offen
            """)
        a("Lend:")
        a("s_endpgm")

    def build(self):
        from gen2 import gemms
        self.setup()
        self.p0_ln()
        self.kgen()
        self.edge1()
        self.conv()
        if self.upto >= 2:
            gemms(self)
        self.finish()
        k = NAME + "_kernel"
        hdr = open("cdna_kernels/" + NAME + ".s.ref").read().split("; Override launch geometry")[0]
        kk = "" if "final" in sys.argv else f"kernel={k} "
        s = hdr + f"; @launch {kk}grid=(256,1,1) block=(256,1,1) lds=163840\n"
        s += f'.amdgcn_target "amdgcn-amd-amdhsa--gfx950"\n.text\n.globl {k}\n.p2align 8\n.type {k},@function\n{k}:\n'
        s += self.a.render() + self.tail.render()
        s += f""".section .rodata,"a"
.p2align 6
.amdhsa_kernel {k}
  .amdhsa_next_free_vgpr 512
  .amdhsa_next_free_sgpr 102
  .amdhsa_accum_offset 256
  .amdhsa_group_segment_fixed_size 0
  .amdhsa_kernarg_size 120
  .amdhsa_user_sgpr_count 2
  .amdhsa_user_sgpr_kernarg_segment_ptr 1
  .amdhsa_system_sgpr_workgroup_id_x 1
.end_amdhsa_kernel
"""
        return s


if __name__ == "__main__":
    out = sys.argv[1]
    stamps = "stamps" in sys.argv
    upto = 99
    for x in sys.argv:
        if x.startswith("upto="):
            upto = int(x[5:])
    g = Gen(stamps=stamps, upto=upto)
    open(out, "w").write(g.build())
    print("nops inserted", g.a.nops, "stamps", g.nst)
```
